```python
import torch

def _softmax(x, axis=-1):
    return torch.softmax(x, dim=axis)
def _gelu(x):
    return torch.nn.functional.gelu(x, approximate="tanh")
def _silu(x):
    return torch.nn.functional.silu(x)
def _sigmoid(x):
    return torch.sigmoid(x)
def _layernorm(x, axis=-1, eps=1e-5):
    m = x.mean(dim=axis, keepdim=True)
    v = x.var(dim=axis, keepdim=True, unbiased=False)
    return (x - m) / torch.sqrt(v + eps)
def _scatter_add(tgt, idx, src, axis=0):
    return tgt.clone().index_add_(axis, idx, src)
def _segment_sum(src, seg, n):
    out = torch.zeros((n,) + src.shape[1:], dtype=src.dtype)
    return out.index_add_(0, seg, src)
def _pad(x, pw):
    flat = tuple(v for pair in reversed(pw) for v in pair)
    return torch.nn.functional.pad(x, flat)

kernel_name = 'sequential_preLN__ssm_conv_h3__moe_arch_mod__prompt'

def setup_inputs():

    _w = (lambda a: (lambda t: t.to(torch.bfloat16) if t.is_floating_point() else t)(torch.as_tensor(a)))
    def _A_setup():
        B, S, D = 1, 2048, 640
        ks = 4
        return {
            "q": _w((lambda *s: torch.randn(*s, dtype=torch.bfloat16) * 0.05)(B, S, D)),
            "k": _w((lambda *s: torch.randn(*s, dtype=torch.bfloat16) * 0.2)(B, S, D)),
            "v": _w((lambda *s: torch.randn(*s, dtype=torch.bfloat16) * 0.2)(B, S, D)),
            "shift_k": _w((lambda *s: torch.randn(*s, dtype=torch.bfloat16) * 0.2)(D, ks) * 0.5),
            "ssm_k": _w((lambda *s: torch.randn(*s, dtype=torch.bfloat16) * 0.8)(D, S) * (1.0 / S ** 0.5)),
            "ssm_D": _w((lambda *s: torch.randn(*s, dtype=torch.bfloat16) * 0.2)(D)),
        }
    _A_in = _A_setup()

    def _B_setup():
        B, S, D, F, C = 1, 2048, 640, 1536, 2
        return {
            "x": _w((lambda *s: torch.randn(*s, dtype=torch.bfloat16) * 0.05)(B, S, D)),
            "w_r": _w((lambda *s: torch.randn(*s, dtype=torch.bfloat16) * 0.05)(D)),
            "w_gate": _w((lambda *s: torch.randn(*s, dtype=torch.bfloat16) * 0.05)(D, F)),
            "w_up": _w((lambda *s: torch.randn(*s, dtype=torch.bfloat16) * 0.05)(D, F)),
            "w_down": _w((lambda *s: torch.randn(*s, dtype=torch.bfloat16) * 0.05)(F, D)),
        }
    _B_in = _B_setup()

    return {
        "A_q": _A_in["q"],
        "A_k": _A_in["k"],
        "A_v": _A_in["v"],
        "A_shift_k": _A_in["shift_k"],
        "A_ssm_k": _A_in["ssm_k"],
        "A_ssm_D": _A_in["ssm_D"],
        "B_x": _B_in["x"],
        "B_w_r": _B_in["w_r"],
        "B_w_gate": _B_in["w_gate"],
        "B_w_up": _B_in["w_up"],
        "B_w_down": _B_in["w_down"],
    }

def reference(A_q, A_k, A_v, A_shift_k, A_ssm_k, A_ssm_D, B_x, B_w_r, B_w_gate, B_w_up, B_w_down):
    def _A_ref(q, k, v, shift_k, ssm_k, ssm_D):
        B, S, D = q.shape
        ks = shift_k.shape[-1]
        k_pad = _pad(k, ((0, 0), (ks - 1, 0), (0, 0)))
        k_shift = torch.zeros_like(k)
        for t in range(ks):
            k_shift = k_shift + k_pad[:, t:t + S, :] * shift_k[:, ks - 1 - t][None, None, :]
        kv = k_shift * v
        L = 2 * S
        kv_pad = _pad(kv, ((0, 0), (0, S), (0, 0)))
        kf_pad = _pad(ssm_k, ((0, 0), (0, S)))
        kv_f = (lambda x, axes=(-2,-1): torch.fft.rfft2(x.float(), dim=axes))(kv_pad[:, None, :, :], axes=(1, 2))
        kf_f = (lambda x, axes=(-2,-1): torch.fft.rfft2(x.float(), dim=axes))(kf_pad[:, None, :], axes=(1, 2))
        kf_f = (lambda x, *d: x.permute(*d))(kf_f, 1, 2, 0)
        y_f = kv_f * kf_f[None, :, :, :]
        y = (lambda x, s, axes=(-2,-1): torch.fft.irfft2(x, s=s, dim=axes).to(torch.bfloat16))(y_f, (1, L), axes=(1, 2))[:, 0, :S, :]
        y = y + kv * ssm_D[None, None, :]
        return q * y

    def _B_ref(x, w_r, w_gate, w_up, w_down):
        B, S, D = x.shape
        C = 2
        r = x @ w_r
        idx = torch.argsort(-r, axis=-1)[:, :C]
        idx_e = (lambda x, n, axis: torch.repeat_interleave(x, n, dim=axis))(idx.reshape(B, C, 1), D, axis=2)
        x_sel = (lambda x, i, axis: torch.take_along_dim(x, i, dim=axis))(x, idx_e, axis=1)
        g = _silu(x_sel @ w_gate)
        u = x_sel @ w_up
        y = (g * u) @ w_down
        r_sel = _sigmoid((lambda x, i, axis: torch.take_along_dim(x, i, dim=axis))(r, idx, axis=1))
        y = y * r_sel.reshape(B, C, 1)
        b_off = (torch.arange(B) * S).reshape(B, 1)
        flat_idx = (idx + b_off).reshape(B * C)
        zero = (x * 0.0).reshape(B * S, D)
        upd = _scatter_add(zero, flat_idx, y.reshape(B * C, D), axis=0)
        return x + upd.reshape(B, S, D)

    x = A_q
    h = x + _A_ref(_layernorm(x, axis=-1), A_k, A_v, A_shift_k, A_ssm_k, A_ssm_D)
    h2 = h + _B_ref(_layernorm(h, axis=-1), B_w_r, B_w_gate, B_w_up, B_w_down)
    return h2
```

```python
import re

TRANS = ('v_exp_', 'v_log_', 'v_rcp_', 'v_rsq_', 'v_sqrt_', 'v_sin_', 'v_cos_')
DPPKW = ('row_shr', 'row_shl', 'row_ror', 'row_bcast', 'quad_perm', 'row_mirror', 'row_half_mirror', 'wave_sh', 'wave_ro', 'row_newbcast')

def regs(tok):
    tok = tok.strip()
    tok = tok.lstrip('-')
    m = re.fullmatch(r'abs\((.*)\)', tok) or re.fullmatch(r'\|(.*)\|', tok)
    if m: tok = m.group(1)
    if tok == 'vcc': return {('s', 'vcc_lo'), ('s', 'vcc_hi')}
    if tok in ('vcc_lo', 'vcc_hi'): return {('s', tok)}
    if tok == 'exec': return {('s', 'exec')}
    if tok == 'm0': return {('s', 'm0')}
    m = re.fullmatch(r'([vsa])(\d+)', tok)
    if m: return {(m.group(1), int(m.group(2)))}
    m = re.fullmatch(r'([vsa])\[(\d+):(\d+)\]', tok)
    if m: return {(m.group(1), i) for i in range(int(m.group(2)), int(m.group(3)) + 1)}
    return set()

class I:
    def __init__(self, text):
        self.text = text
        t = text.split(';')[0].strip()
        self.label = t.endswith(':')
        self.empty = (t == '') or t.startswith('.')
        self.mn = ''
        self.defs = set(); self.uses = set()
        self.kind = None
        if self.label or self.empty: return
        parts = t.split(None, 1)
        mn = self.mn = parts[0]
        rest = parts[1] if len(parts) > 1 else ''
        ops = []; depth = 0; cur = ''
        for ch in rest:
            if ch in '[(': depth += 1
            if ch in '])': depth -= 1
            if ch == ',' and depth == 0:
                ops.append(cur.strip()); cur = ''
            else:
                cur += ch
        if cur.strip(): ops.append(cur.strip())
        mods = ''
        if ops:
            last = ops[-1].split()
            mods = ' '.join(last[1:]); ops[-1] = last[0]
        self.ops = ops; self.mods = mods
        R = [regs(o) for o in ops]
        U = lambda l: set().union(*l) if l else set()
        if mn.startswith('v_mfma'):
            self.kind = 'mfma'; self.defs = R[0]; self.uses = U(R[1:]); self.srcc = R[3]; self.srcab = R[1] | R[2]
            self.passes = 4 if '16x16x32' in mn or '16x16x16' in mn else 8
        elif mn.startswith('v_cmpx'):
            self.kind = 'valu'; self.defs = R[0] | {('s', 'exec')}; self.uses = U(R[1:])
        elif mn.startswith('v_permlane'):
            self.kind = 'valu'; self.defs = R[0] | R[1]; self.uses = R[0] | R[1]
        elif mn.startswith(('v_add_co', 'v_sub_co', 'v_addc_co', 'v_subb_co')):
            self.kind = 'valu'; self.defs = R[0] | R[1]; self.uses = U(R[2:])
        elif mn.startswith('v_nop'):
            self.kind = 'valu'
        elif mn.startswith('v_'):
            self.kind = 'valu'; self.defs = R[0]; self.uses = U(R[1:])
            if mn.startswith(('v_fmac', 'v_pk_fmac', 'v_writelane', 'v_dot2c')) or any(k in mods for k in DPPKW):
                self.uses |= R[0]
        elif mn.startswith(('buffer_', 'global_')):
            self.kind = 'vmem'
            isload = '_load' in mn
            if isload and ' lds' not in ' ' + mods and '_lds' not in mn:
                self.defs = R[0]; self.uses = U(R[1:])
            else:
                self.uses = U(R)
                if 'atomic' in mn and 'sc0' in mods: self.defs = R[0]
            self.widestore = ('store' in mn) and ('x3' in mn or 'x4' in mn)
            self.data = R[0] if mn.startswith('buffer_') else (R[1] if len(R) > 1 else set())
            self.ldsdma = isload and (' lds' in ' ' + mods or '_lds' in mn)
        elif mn.startswith('ds_'):
            self.kind = 'ds'
            if mn.startswith(('ds_read', 'ds_bpermute', 'ds_permute', 'ds_swizzle')):
                self.defs = R[0]; self.uses = U(R[1:])
            else:
                self.uses = U(R)
        elif mn.startswith('s_'):
            self.kind = 'salu'
            if mn.startswith(('s_cmp', 's_waitcnt', 's_nop', 's_barrier', 's_branch', 's_cbranch', 's_endpgm', 's_sleep', 's_setprio', 's_bitcmp')):
                self.uses = U(R)
            else:
                self.defs = R[0] if R else set(); self.uses = U(R[1:])
                if 'saveexec' in mn: self.defs = self.defs | {('s', 'exec')}
        else:
            raise ValueError('unknown instr ' + text)
        self.dpp = self.kind == 'valu' and any(k in mods for k in DPPKW)
        self.trans = mn.startswith(TRANS)
    def states(self):
        if self.mn == 's_nop': return int(self.ops[0], 0) + 1
        return 1

def need(p, c):
    n = 0
    vd = {r for r in p.defs if r[0] in 'va'}
    sd = {r for r in p.defs if r[0] == 's'}
    if p.kind == 'valu':
        if c.kind == 'mfma' and vd & c.uses: n = max(n, 2)
        if c.kind == 'mfma' and ('s', 'exec') in sd: n = max(n, 4)
        if c.kind == 'valu':
            if c.dpp and vd & c.uses: n = max(n, 2)
            if c.dpp and ('s', 'exec') in sd: n = max(n, 5)
            if c.mn.startswith('v_permlane') and vd & c.uses: n = max(n, 2)
            if c.mn.startswith(('v_readlane', 'v_readfirstlane')) and vd & c.uses: n = max(n, 1)
            if c.mn.startswith(('v_readlane', 'v_readfirstlane', 'v_writelane', 'v_permlane')) and ('s', 'exec') in sd: n = max(n, 4)
            if sd & c.uses:
                n = max(n, 4 if c.mn.startswith(('v_readlane', 'v_writelane')) else 2)
            if p.trans and not c.trans and vd & c.uses: n = max(n, 1)
            if p.trans and c.trans and vd & c.uses: n = max(n, 1)
            if ('op_sel' in p.mods or 'sdwa' in p.mn or 'dst_sel' in p.mods) and not p.mn.startswith('v_pk_') and vd & (c.uses | c.defs): n = max(n, 1)
        if c.kind == 'vmem' and sd & c.uses: n = max(n, 5)
        if c.kind == 'salu' and sd & c.uses: n = max(n, 1)
    if p.kind == 'mfma':
        P = {2: 0, 4: 1, 8: 2, 16: 3}[p.passes]
        if c.kind == 'mfma':
            if vd & c.srcab: n = max(n, (5, 8, 12, 20)[P])
            if vd & c.srcc and c.srcc != p.defs: n = max(n, (4, 6, 10, 18)[P])
            if vd & c.defs and c.srcc != p.defs and not (vd & c.srcc): n = max(n, (5, 8, 12, 20)[P])
        elif c.kind in ('valu', 'vmem', 'ds'):
            if vd & (c.uses | c.defs): n = max(n, (5, 8, 12, 20)[P])
            if c.kind == 'valu' and p.srcc & c.defs: n = max(n, (1, 3, 7, 15)[P])
    if p.kind == 'vmem' and getattr(p, 'widestore', False):
        if p.data & c.defs: n = max(n, 2)
    if p.kind == 'salu' and ('s', 'm0') in sd and c.kind == 'vmem' and c.ldsdma: n = max(n, 1)
    return n

class Asm:
    def __init__(self):
        self.lines = []
    def __call__(self, text):
        for l in text.split('\n'):
            l = l.strip()
            if l: self.lines.append(l)
    def finish(self):
        out = []; hist = []
        nn = 0
        for l in self.lines:
            i = I(l)
            if i.label or i.empty:
                out.append(l if i.label else '  ' + l); continue
            req = 0
            for p, d in hist:
                req = max(req, need(p, i) - d)
            if req > 0:
                out.append(f'  s_nop {req - 1}'); nn += 1
                hist = [(p, d + req) for p, d in hist]
            out.append('  ' + l)
            s = i.states()
            hist = [(p, d + s) for p, d in hist if d + s < 24]
            hist.append((i, 0))
        self.nops = nn
        return '\n'.join(out) + '\n'
```

```python
import sys
from asmlib import Asm

NAME = 'sequential_preLN__ssm_conv_h3__moe_arch_mod__prompt'

class Cfg:
    stamps = False
    out_flag = 'sc1'
    spin = 40000

NB = 2621440
U_OFF = 0
Y_OFF = NB
ROWS_OFF = 2 * NB
CAND_OFF = ROWS_OFF + 256 * 5120
ACT_OFF = CAND_OFF + 256 * 128
WS_END = ACT_OFF + 96 * 128
STAMP_OFF = 8 << 20
KCOPY = 4160; KCH = 4 * KCOPY
UL = 4 * KCH; UP = 4640
WG_L, WU_L, WD_L = 0, 20480, 40960
TR = 90112
KEY = TR + 10240
WTOP = KEY + 32
RED1 = WTOP + 32
RED2 = RED1 + 1024
LDS_SIZE = RED2 + 1024
sWAVE, sX, sJ, sTB, sROLE = 's3', 's4', 's5', 's6', 's7'
def srd(b): return f's[{b}:{b+3}]'
rK, rV, rSK, rWS, rDBG, rSSM, rQ, rWR, rOUT, rD, rWG, rWU, rWD = 8, 12, 16, 20, 24, 28, 32, 36, 40, 44, 48, 52, 56
SRDS = [(rK, 8, NB), (rV, 16, NB), (rWS, 104, None), (rSK, 24, 5120), (rDBG, 96, 256), (rSSM, 32, NB), (rQ, 0, NB), (rWR, 56, 1280),
        (rOUT, 88, NB), (rD, 40, 1280), (rWG, 64, 1966080), (rWU, 72, 1966080), (rWD, 80, 1966080)]
sHI = 's60'
sCNT = 's61'
sCH0 = 's62'
sT = ['s63', 's64', 's65', 's66', 's67', 's68', 's69', 's70', 's71']
sKEY1, sKEY2 = 's72', 's73'
sROW1, sROW2 = 's74', 's75'
sFE = 's76'
sSEL = 's77'
sM2 = 's[78:79]'
sEX = 's[80:81]'
sST = 84
sIDX1, sIDX2 = 's86', 's87'
sISCONV = 's88'

def vr(a, n): return f'v[{a}:{a+n-1}]'

def build(cfg):
    a = Asm()
    nst = [0]
    def stamp(i, wave=0):
        if not cfg.stamps: return
        a(f'''s_memrealtime s[{sST}:{sST+1}]
s_waitcnt lgkmcnt(0)
v_writelane_b32 v253, s{sST}, {i}''')
    def spin_check(lbl_again, lbl_out):
        a(f'''s_add_u32 {sCNT}, {sCNT}, 1
s_cmp_ge_u32 {sCNT}, {cfg.spin}
s_cbranch_scc1 {lbl_out}''')
    def round_bf16(dst, src):
        a(f'v_cvt_pk_bf16_f32 {dst}, {src}, {src}\nv_and_b32 {dst}, {sHI}, {dst}')
    def wave_sum(rs):
        for m in ('row_shr:1', 'row_shr:2', 'row_shr:4', 'row_shr:8'):
            for r in rs: a(f'v_add_f32_dpp {r}, {r}, {r} {m} row_mask:0xf bank_mask:0xf bound_ctrl:1')
        for m in ('row_bcast:15 row_mask:0xa', 'row_bcast:31 row_mask:0xc'):
            for r in rs: a(f'v_add_f32_dpp {r}, {r}, {r} {m} bank_mask:0xf')
    def unpack(dst, src):
        a(f'v_lshlrev_b32 v{dst}, 16, v{src}\nv_and_b32 v{dst+1}, {sHI}, v{src}')
    def ln_stats(x, t):
        a(f'v_pk_add_f32 {vr(t,2)}, {vr(x,2)}, {vr(x+2,2)}')
        a(f'v_pk_mul_f32 {vr(t+2,2)}, {vr(x,2)}, {vr(x,2)}')
        a(f'v_pk_add_f32 {vr(t+4,2)}, {vr(x+4,2)}, {vr(x+6,2)}')
        a(f'v_pk_fma_f32 {vr(t+2,2)}, {vr(x+2,2)}, {vr(x+2,2)}, {vr(t+2,2)}')
        a(f'v_pk_add_f32 {vr(t,2)}, {vr(t,2)}, {vr(x+8,2)}')
        a(f'v_pk_mul_f32 {vr(t+6,2)}, {vr(x+4,2)}, {vr(x+4,2)}')
        a(f'v_pk_fma_f32 {vr(t+2,2)}, {vr(x+8,2)}, {vr(x+8,2)}, {vr(t+2,2)}')
        a(f'v_pk_add_f32 {vr(t,2)}, {vr(t,2)}, {vr(t+4,2)}')
        a(f'v_pk_fma_f32 {vr(t+6,2)}, {vr(x+6,2)}, {vr(x+6,2)}, {vr(t+6,2)}')
        a(f'v_add_f32 v{t}, v{t}, v{t+1}')
        a(f'v_pk_add_f32 {vr(t+2,2)}, {vr(t+2,2)}, {vr(t+6,2)}')
        a(f'v_add_f32 v{t+2}, v{t+2}, v{t+3}')
        wave_sum([f'v{t}', f'v{t+2}'])
        a(f'v_readlane_b32 {sT[0]}, v{t}, 63\nv_readlane_b32 {sT[1]}, v{t+2}, 63')
        a(f'v_mov_b32 v{t+4}, 0x3acccccd')
        a(f'v_mul_f32 v{t}, {sT[0]}, v{t+4}')
        a(f'v_mul_f32 v{t+1}, {sT[1]}, v{t+4}')
        a(f'v_fma_f32 v{t+1}, -v{t}, v{t}, v{t+1}')
        a(f'v_max_f32 v{t+1}, 0, v{t+1}')
        round_bf16(f'v{t+1}', f'v{t+1}')
        round_bf16(f'v{t}', f'v{t}')
        a(f'v_add_f32 v{t+1}, 0x3727c5ac, v{t+1}')
        round_bf16(f'v{t+1}', f'v{t+1}')
        a(f'v_sqrt_f32 v{t+1}, v{t+1}')
        round_bf16(f'v{t+1}', f'v{t+1}')
        a(f'v_rcp_f32 v{t+1}, v{t+1}')
    def ln_apply(x, t, dstf, dstp):
        for i in range(5): a(f'v_pk_add_f32 {vr(dstf+2*i,2)}, {vr(x+2*i,2)}, {vr(t,2)} op_sel_hi:[1,0] neg_lo:[0,1] neg_hi:[0,1]')
        for i in range(5): a(f'v_cvt_pk_bf16_f32 v{dstp+i}, v{dstf+2*i}, v{dstf+2*i+1}')
        for i in range(5): unpack(dstf+2*i, dstp+i)
        for i in range(5): a(f'v_pk_mul_f32 {vr(dstf+2*i,2)}, {vr(dstf+2*i,2)}, {vr(t,2)} op_sel:[0,1] op_sel_hi:[1,1]')
        for i in range(5): a(f'v_cvt_pk_bf16_f32 v{dstp+i}, v{dstf+2*i}, v{dstf+2*i+1}')
        for i in range(5): unpack(dstf+2*i, dstp+i)

    a(f's_cmp_ge_u32 s2, 256\ns_cbranch_scc1 Lexit')
    if cfg.stamps: a('v_mov_b32 v253, 0')
    stamp(0)
    for r, off, n in SRDS: a(f's_load_dwordx2 s[{r}:{r+1}], s[0:1], {off}')
    a(f'v_lshrrev_b32 v2, 6, v0\nv_and_b32 v1, 63, v0')
    for r, off, n in SRDS:
        n = n if n is not None else ((STAMP_OFF + 256*8*64) if cfg.stamps else WS_END)
        a(f's_mov_b32 s{r+2}, {n}\ns_mov_b32 s{r+3}, 0x20000')
    a(f'''v_readfirstlane_b32 {sWAVE}, v2
s_and_b32 {sX}, s2, 7
s_lshr_b32 {sJ}, s2, 3
s_lshl_b32 {sTB}, {sX}, 5
s_add_u32 {sTB}, {sTB}, {sJ}
s_mov_b32 {sHI}, 0xffff0000
s_mov_b32 {sFE}, 0xfffffffe
s_mul_i32 {sT[0]}, {sTB}, 10240
v_lshl_add_u32 v3, v0, 2, {sT[0]}
v_lshlrev_b32 v6, 11, v2
v_lshl_add_u32 v6, v1, 4, v6
v_add_u32 v6, {sT[0]}, v6
v_mov_b32 v40, -1
v_mov_b32 v41, -1
v_mov_b32 v42, -1
v_mov_b32 v43, -1
v_subrev_u32 v4, 3840, v3
v_add_u32 v5, 5120, v3
v_lshlrev_b32 v7, 4, v0
s_mul_i32 {sT[1]}, {sX}, 20
s_add_u32 {sT[1]}, {sT[1]}, {sJ}
s_mul_i32 {sT[2]}, {sX}, 12
s_add_u32 {sT[2]}, {sT[2]}, {sJ}
s_sub_u32 {sT[2]}, {sT[2]}, 20
s_cmp_lt_u32 {sJ}, 20
s_cselect_b32 {sROLE}, {sT[1]}, {sT[2]}
s_cselect_b32 {sISCONV}, 1, 0
s_cmp_ge_u32 {sWAVE}, 5
s_waitcnt lgkmcnt(0)
s_cbranch_scc1 Laux0''')
    a(f'''buffer_store_dwordx4 v[40:43], v6, {srd(rWS)}, 0 offen sc1
buffer_store_dwordx4 v[40:43], v6, {srd(rWS)}, 0 offen offset:1024 sc1
s_barrier''')
    KR, VR_, SKR = 10, 21, 30
    for i in range(3): a(f'buffer_load_dword v{KR+i}, v4, {srd(rK)}, 0 offen offset:{1280*i}')
    for i in range(4): a(f'buffer_load_dword v{KR+3+i}, v3, {srd(rK)}, 0 offen offset:{1280*i}')
    for i in range(4): a(f'buffer_load_dword v{KR+7+i}, v5, {srd(rK)}, 0 offen offset:{1280*i}')
    a(f'buffer_load_dwordx4 {vr(SKR,4)}, v7, {srd(rSK)}, 0 offen')
    for i in range(4): a(f'buffer_load_dword v{VR_+i}, v3, {srd(rV)}, 0 offen offset:{1280*i}')
    for i in range(4): a(f'buffer_load_dword v{VR_+4+i}, v5, {srd(rV)}, 0 offen offset:{1280*i}')
    a('s_waitcnt vmcnt(20)\ns_barrier')
    KF, SF, VF, KS = 40, 62, 70, 86
    a('s_waitcnt vmcnt(8)')
    stamp(1)
    a(f'''v_lshlrev_b32 v{SF}, 16, v{SKR}
v_lshlrev_b32 v{SF+1}, 16, v{SKR+2}
v_and_b32 v{SF+2}, {sHI}, v{SKR}
v_and_b32 v{SF+3}, {sHI}, v{SKR+2}
v_lshlrev_b32 v{SF+4}, 16, v{SKR+1}
v_lshlrev_b32 v{SF+5}, 16, v{SKR+3}
v_and_b32 v{SF+6}, {sHI}, v{SKR+1}
v_and_b32 v{SF+7}, {sHI}, v{SKR+3}''')
    for i in range(11): unpack(KF + 2*i, KR + i)
    for t in range(8): a(f'v_pk_mul_f32 {vr(KS+2*t,2)}, {vr(KF+2*t,2)}, {vr(SF+6,2)}')
    for j in (2, 1, 0):
        for t in range(8): a(f'v_pk_fma_f32 {vr(KS+2*t,2)}, {vr(KF+2*(t+3-j),2)}, {vr(SF+2*j,2)}, {vr(KS+2*t,2)}')
    a('s_waitcnt vmcnt(0)')
    for i in range(8): unpack(VF + 2*i, VR_ + i)
    for t in range(8): a(f'v_pk_mul_f32 {vr(KS+2*t,2)}, {vr(KS+2*t,2)}, {vr(VF+2*t,2)}')
    for e in range(2):
        for k in range(4): a(f'v_cvt_pk_bf16_f32 v{40+4*e+k}, v{KS+2*(7-2*k)+e}, v{KS+2*(6-2*k)+e}')
        for k in range(4): a(f'v_min_u32 v{40+4*e+k}, {sFE}, v{40+4*e+k}')
        a(f'buffer_store_dwordx4 {vr(40+4*e,4)}, v6, {srd(rWS)}, 0 offen offset:{1024*e} sc1')
    stamp(2)
    a(f'''s_cmp_eq_u32 {sISCONV}, 0
s_cbranch_scc1 Lffn_pre
s_cmp_eq_u32 {sWAVE}, 4
s_cbranch_scc1 Lb1''')
    vA, vB = 'v8', 'v9'
    AD = 24
    a(f'''v_lshlrev_b32 v2, 2, v1
buffer_load_dword v20, v2, {srd(rDBG)}, 0 offen sc1
s_lshl_b32 {sT[0]}, {sROLE}, 2
s_and_b32 {sT[1]}, {sT[0]}, 63
s_lshl_b32 {sT[1]}, {sT[1]}, 1
s_bfe_u32 {sT[2]}, {sT[0]}, 0x10006
s_and_b32 {sT[0]}, {sT[0]}, 0xffffff80
s_add_u32 {sCH0}, {sT[0]}, {sT[1]}
s_add_u32 {sCH0}, {sCH0}, {sT[2]}
s_lshl_b32 {sT[0]}, {sWAVE}, 1
s_add_u32 {sCH0}, {sCH0}, {sT[0]}
s_lshl_b32 {sT[0]}, {sCH0}, 12
s_lshl_b32 {sT[1]}, {sCH0}, 1
v_mov_b32 v3, 0
buffer_load_dwordx2 v[22:23], v3, {srd(rSSM)}, {sT[0]} offen
buffer_load_ushort v21, v3, {srd(rD)}, {sT[1]} offen
v_and_b32 v4, 15, v1                       ; m / n
v_lshrrev_b32 v5, 4, v1                    ; kg
v_add_u32 v10, 1, v4
v_and_b32 v11, 3, v10
v_mul_u32_u24 v11, {KCOPY}, v11
v_lshrrev_b32 v10, 2, v10
v_lshl_add_u32 v10, v5, 1, v10
v_lshl_add_u32 {vA}, v10, 3, v11
s_mul_i32 {sT[2]}, {sWAVE}, {KCH}
v_add_u32 {vA}, {sT[2]}, {vA}
v_lshlrev_b32 v10, 1, v4
v_sub_u32 v10, v10, v5
v_lshlrev_b32 v10, 4, v10
s_mul_i32 {sT[3]}, {sWAVE}, {UP}
s_add_u32 {sT[3]}, {sT[3]}, {UL}
v_add_u32 {vB}, {sT[3]}, v10
v_add_u32 {vB}, 80, {vB}
v_mov_b32 v12, 0
v_mov_b32 v13, 0
v_mov_b32 v14, 0
v_mov_b32 v15, 0
v_lshl_add_u32 v10, v1, 4, {sT[3]}
s_mov_b32 exec_hi, 0
ds_write_b128 v10, v[12:15]
s_mov_b32 exec_hi, -1
v_lshrrev_b32 v10, 2, v1
v_and_b32 v11, 3, v1
s_lshl_b32 {sT[4]}, {sWAVE}, 6
v_add_u32 v10, {sT[4]}, v10
v_mul_u32_u24 v16, 10240, v10
v_lshl_add_u32 v16, v11, 4, v16
s_lshl_b32 {sT[4]}, {sROLE}, 6
v_add_u32 v16, {sT[4]}, v16                ; global
v_mul_u32_u24 v17, {UP}, v11
v_lshl_add_u32 v17, v10, 4, v17
v_add_u32 v17, {UL + 512}, v17             ; LDS
s_mov_b32 {sT[5]}, {16*10240}
s_mov_b32 {sT[6]}, {32*10240}
s_mov_b32 {sT[7]}, {48*10240}
s_mov_b32 {sCNT}, 0
s_waitcnt vmcnt(0)
v_lshlrev_b32 v12, 16, v22
v_alignbit_b32 v13, v23, v22, 16
v_cmp_eq_u32 vcc, 7, v1
v_cndmask_b32 v14, 0, v12, vcc
v_cndmask_b32 v15, 0, v13, vcc
v_cmp_eq_u32 vcc, 5, v1
v_cndmask_b32 v15, v15, v22, vcc
v_cmp_eq_u32 vcc, 3, v1
v_cndmask_b32 v15, v15, v12, vcc
v_mov_b32 v12, 0
v_mov_b32 v13, 0
v_lshrrev_b32 v10, 1, v1
v_mul_u32_u24 v10, {KCOPY}, v10
v_and_b32 v11, 1, v1
v_lshl_add_u32 v10, v11, 4, v10
v_add_u32 v10, {sT[2]}, v10
s_mov_b64 exec, 0xff
ds_write_b128 v10, v[12:15]
s_mov_b64 exec, -1
v_sub_u32 v10, 15, v4
v_and_b32 v11, 1, v10
v_lshlrev_b32 v11, 4, v11
v_lshlrev_b32 v11, v11, v21
v_lshrrev_b32 v10, 1, v10
v_lshlrev_b32 v12, 2, v5
v_sub_u32 v10, v10, v12''')
    for d in range(4): a(f'v_cmp_eq_u32 vcc, {d}, v10\nv_cndmask_b32 v{AD+d}, 0, v11, vcc')
    a(f'''Lc1:
v_and_b32 v20, 0xffff, v20
v_cmp_ne_u32 vcc, 4, v20
s_cbranch_vccz Lc1ok''')
    spin_check('Lc1', 'Lc1ok')
    a(f'''buffer_load_dword v20, v2, {srd(rDBG)}, 0 offen sc1
s_waitcnt vmcnt(0)
s_branch Lc1
Lc1ok:''')
    stamp(3)
    a('Lu:')
    for n, so in enumerate(('0', sT[5], sT[6], sT[7])): a(f'buffer_load_dwordx4 {vr(64+4*n,4)}, v16, {srd(rWS)}, {so} offen sc1')
    a('s_waitcnt vmcnt(0)')
    a('v_max3_u32 v18, v64, v65, v66')
    for r in range(67, 79, 2): a(f'v_max3_u32 v18, v18, v{r}, v{r+1}')
    a('v_max_u32 v18, v18, v79\nv_cmp_eq_u32 vcc, -1, v18')
    spin_check('Lu', 'Luok')
    a('s_and_b64 exec, exec, vcc\ns_cbranch_execnz Lu\nLuok:\ns_mov_b64 exec, -1')
    for n in range(4): a(f'ds_write_b128 v17, {vr(64+4*n,4)} offset:{256*n}')
    stamp(4)
    a('s_branch Lb1')
    a(f'''Laux0:
s_cmp_lg_u32 {sWAVE}, 5
s_cbranch_scc1 Laux1
s_lshl_b32 {sT[0]}, {sTB}, 7
s_add_u32 {sT[0]}, {sT[0]}, {CAND_OFF}
s_lshl_b32 {sT[1]}, {sROLE}, 7
s_add_u32 {sT[1]}, {sT[1]}, {ACT_OFF - 128}
s_cmp_eq_u32 {sISCONV}, 0
s_movk_i32 {sT[2]}, 0xff
s_cselect_b32 {sT[2]}, 0xffff, {sT[2]}
v_mov_b32 v2, {sT[0]}
v_mov_b32 v3, {sT[1]}
v_cmp_gt_u32 vcc, 8, v1
v_cndmask_b32 v2, v3, v2, vcc
v_lshl_add_u32 v2, v1, 4, v2
s_mov_b32 exec_hi, 0
s_mov_b32 exec_lo, {sT[2]}
buffer_store_dwordx4 v[40:43], v2, {srd(rWS)}, 0 offen sc1
s_mov_b64 exec, -1
Laux1:
s_barrier
s_waitcnt vmcnt(0)
s_barrier
s_cmp_lg_u32 {sWAVE}, 7
s_cbranch_scc1 Laux2
s_and_b32 {sT[0]}, s2, 63
s_lshl_b32 {sT[0]}, {sT[0]}, 2
v_mov_b32 v2, {sT[0]}
v_mov_b32 v3, 1
s_mov_b64 exec, 1
buffer_atomic_add v3, v2, {srd(rDBG)}, 0 offen sc1
s_mov_b64 exec, -1
Laux2:
s_cmp_eq_u32 {sISCONV}, 0
s_cbranch_scc1 Lffn_pre''')
    a(f'''s_lshl_b32 {sT[0]}, {sROLE}, 2
s_and_b32 {sT[1]}, {sT[0]}, 63
s_lshl_b32 {sT[1]}, {sT[1]}, 1
s_bfe_u32 {sT[2]}, {sT[0]}, 0x10006
s_and_b32 {sT[0]}, {sT[0]}, 0xffffff80
s_add_u32 {sCH0}, {sT[0]}, {sT[1]}
s_add_u32 {sCH0}, {sCH0}, {sT[2]}
s_lshl_b32 {sCH0}, {sCH0}, 12
v_lshlrev_b32 v2, 4, v1''')
    for n in range(6):
        a(f'''s_sub_u32 {sT[0]}, {7 + 3*n}, {sWAVE}
s_min_u32 {sT[0]}, {sT[0]}, 15
s_lshr_b32 {sT[1]}, {sT[0]}, 2
s_and_b32 {sT[0]}, {sT[0]}, 3
s_lshl_b32 {sT[0]}, {sT[0]}, 10
s_lshl_b32 {sT[2]}, {sT[1]}, 13
s_add_u32 {sT[2]}, {sT[2]}, {sT[0]}
s_add_u32 {sT[2]}, {sT[2]}, {sCH0}
buffer_load_dwordx4 {vr(64+6*n,4)}, v2, {srd(rSSM)}, {sT[2]} offen
buffer_load_dwordx2 {vr(68+6*n,2)}, v2, {srd(rSSM)}, {sT[2]} offen offset:16
s_mul_i32 {sT[1]}, {sT[1]}, {KCH}
s_add_u32 {sT[1]}, {sT[1]}, {sT[0]}
s_add_u32 {sT[1]}, {sT[1]}, 32
v_add_u32 v{10+n}, {sT[1]}, v2''')
    for n in range(6):
        d = 64 + 6*n; t = 104 + 12*(n & 1)
        a(f's_waitcnt vmcnt({10 - 2*n})')
        a(f'ds_write_b128 v{10+n}, {vr(d,4)}')
        for i in range(4): a(f'v_alignbit_b32 v{t+i}, v{d+i+1}, v{d+i}, 16')
        a(f'ds_write_b128 v{10+n}, {vr(t,4)} offset:{KCOPY}')
        for i in range(4): a(f'v_mov_b32 v{t+4+i}, v{d+i+1}')
        a(f'ds_write_b128 v{10+n}, {vr(t+4,4)} offset:{2*KCOPY}')
        for i in range(4): a(f'v_alignbit_b32 v{t+8+i}, v{d+i+2}, v{d+i+1}, 16')
        a(f'ds_write_b128 v{10+n}, {vr(t+8,4)} offset:{3*KCOPY}')
    stamp(5, 7)
    QR, WR = 10, 16
    def q_loads():
        a(f'''s_lshl_b32 {sT[0]}, {sTB}, 3
s_add_u32 {sT[0]}, {sT[0]}, {sWAVE}
s_mul_i32 {sT[0]}, {sT[0]}, 1280
v_lshlrev_b32 v2, 4, v1
v_lshlrev_b32 v3, 2, v1
buffer_load_dwordx4 {vr(QR,4)}, v2, {srd(rQ)}, {sT[0]} offen
buffer_load_dword v14, v3, {srd(rQ)}, {sT[0]} offen offset:1024
buffer_load_dwordx4 {vr(WR,4)}, v2, {srd(rWR)}, 0 offen
buffer_load_dword v15, v3, {srd(rWR)}, 0 offen offset:1024''')
    a('Lb1:\ns_waitcnt lgkmcnt(0)\ns_barrier')
    a(f's_cmp_ge_u32 {sWAVE}, 4\ns_cbranch_scc1 Lhelp')
    ACC = 32
    BUF = [(64, 96), (128, 160)]
    def a_loads(r, base):
        out = []
        for J in range(8):
            j = 8*J + r
            out.append(f'ds_read_b64 {vr(base+4*J,2)}, {vA} offset:{64*j}')
            out.append(f'ds_read_b64 {vr(base+4*J+2,2)}, {vA} offset:{64*j+8}')
        return out
    def b_loads(r, base):
        return [f'ds_read_b128 {vr(base+4*Q,4)}, {vB} offset:{64*(8*Q - r + 7)}' for Q in range(8)]
    A0, B0 = BUF[0]
    bl = b_loads(0, B0); al = a_loads(0, A0)
    for l in bl: a(l)
    for l in al: a(l)
    q_loads()
    for Q in range(8):
        if Q == 0: a('s_waitcnt lgkmcnt(15)')
        a(f'v_mfma_f32_16x16x32_bf16 {vr(ACC+4*Q,4)}, {vr(AD,4)}, {vr(B0+4*Q,4)}, 0')
    for r in range(8):
        Ab, Bb = BUF[r & 1]
        An, Bn = BUF[(r + 1) & 1]
        nxt = []
        if r < 7:
            bl = b_loads(r + 1, Bn); al = a_loads(r + 1, An)
            nxt = bl[:1] + al + bl[1:]
        a('s_waitcnt lgkmcnt(0)')
        if r == 6:
            a(f'buffer_load_dword v20, v3, {srd(rDBG)}, 0 offen sc1')
        for Q in range(8):
            for J in range(8 - Q):
                a(f'v_mfma_f32_16x16x32_bf16 {vr(ACC+4*(J+Q),4)}, {vr(Ab+4*J,4)}, {vr(Bb+4*Q,4)}, {vr(ACC+4*(J+Q),4)}')
                if nxt: a(nxt.pop(0))
    stamp(6)
    a(f'''v_and_b32 v4, 15, v1
v_lshrrev_b32 v5, 4, v1
v_and_b32 v6, 1, v5
v_lshlrev_b32 v6, 3, v6
v_lshrrev_b32 v7, 1, v5
v_lshl_add_u32 v6, v7, 2, v6
v_lshrrev_b32 v7, 2, v4
v_add_u32 v6, v6, v7
v_mul_u32_u24 v6, 40960, v6
v_and_b32 v7, 3, v4
v_lshl_add_u32 v6, v7, 4, v6
s_lshl_b32 {sT[0]}, {sCH0}, 6
s_add_u32 {sT[0]}, {sT[0]}, {Y_OFF}
v_cmp_gt_u32 vcc, 32, v1
v_cndmask_b32 v7, 1, 2, vcc
s_mov_b32 {sCNT}, 0
s_waitcnt vmcnt(0)
Lc2:
v_lshrrev_b32 v20, 16, v20
v_cmp_ne_u32 vcc, v7, v20
s_cbranch_vccz Lc2ok''')
    spin_check('Lc2', 'Lc2ok')
    a(f'''buffer_load_dword v20, v3, {srd(rDBG)}, 0 offen sc1
s_waitcnt vmcnt(0)
s_branch Lc2
Lc2ok:''')
    for p in range(4):
        o = 64 + 4*p
        A_, B_ = ACC + 8*p, ACC + 8*p + 4
        a(f'''v_cvt_pk_bf16_f32 v{o}, v{A_}, v{A_+1}
v_cvt_pk_bf16_f32 v{o+1}, v{A_+2}, v{A_+3}
v_cvt_pk_bf16_f32 v{o+2}, v{B_}, v{B_+1}
v_cvt_pk_bf16_f32 v{o+3}, v{B_+2}, v{B_+3}''')
        for k in range(4): a(f'v_min_u32 v{o+k}, {sFE}, v{o+k}')
        a(f'v_permlane16_swap_b32 v{o}, v{o+2}\nv_permlane16_swap_b32 v{o+1}, v{o+3}')
        a(f'buffer_store_dwordx4 {vr(o,4)}, v6, {srd(rWS)}, {sT[0]} offen sc1')
        if p < 3: a(f's_add_u32 {sT[0]}, {sT[0]}, {16*40960}')
    a(f'''s_cmp_lg_u32 {sWAVE}, 0
s_cbranch_scc1 Lln1
s_lshl_b32 {sT[0]}, {sTB}, 7
s_add_u32 {sT[0]}, {sT[0]}, {CAND_OFF + 64}
v_mov_b32 v4, 0
s_mov_b64 exec, 1
buffer_store_dword v4, v4, {srd(rWS)}, {sT[0]} offen sc1
s_mov_b64 exec, -1
s_branch Lln1''')
    FA1, FA2 = 64, 84
    a(f'''Lffn_pre:
s_waitcnt vmcnt(0)
s_mul_i32 {sT[0]}, {sROLE}, 40960
s_mul_i32 {sT[1]}, {sWAVE}, 5120
s_add_u32 {sT[0]}, {sT[0]}, {sT[1]}
s_add_u32 {sT[0]}, {sT[0]}, {Y_OFF}
v_lshlrev_b32 v2, 4, v1
v_mov_b32 v40, -1
v_mov_b32 v41, -1
v_mov_b32 v42, -1
v_mov_b32 v43, -1
s_add_u32 {sT[1]}, {sT[0]}, 4096''')
    for i in range(4): a(f'buffer_store_dwordx4 v[40:43], v2, {srd(rWS)}, {sT[0]} offen offset:{1024*i} sc1')
    a(f'buffer_store_dwordx4 v[40:43], v2, {srd(rWS)}, {sT[1]} offen sc1')
    a(f'''v_lshrrev_b32 v4, 1, v1
v_and_b32 v5, 1, v1
v_mul_u32_u24 v6, 3072, v4
v_lshl_add_u32 v6, v5, 4, v6
v_mul_u32_u24 v7, 1280, v4
v_lshl_add_u32 v7, v5, 4, v7
s_and_b32 {sT[0]}, {sWAVE}, 3
s_mul_i32 {sT[0]}, {sT[0]}, {160*3072}
s_lshl_b32 {sT[1]}, {sROLE}, 5
s_add_u32 {sT[0]}, {sT[0]}, {sT[1]}
s_mul_i32 {sT[2]}, {sWAVE}, 5120
s_cmp_ge_u32 {sWAVE}, 4
s_cselect_b32 s{rWG}, s{rWU}, s{rWG}
s_cselect_b32 s{rWG+1}, s{rWU+1}, s{rWG+1}''')
    for i in range(5):
        a(f'''s_mov_b32 m0, {sT[2]}
s_add_u32 {sT[2]}, {sT[2]}, 1024
buffer_load_dwordx4 v6, {srd(rWG)}, {sT[0]} offen lds
s_add_u32 {sT[0]}, {sT[0]}, {32*3072}''')
    a(f'''s_cmp_lt_u32 {sJ}, 27
s_cbranch_scc1 Lffn_nod
s_mul_i32 {sT[0]}, {sWAVE}, {192*1280}
s_mul_i32 {sT[1]}, {sX}, 5
s_add_u32 {sT[1]}, {sT[1]}, {sJ}
s_sub_u32 {sT[1]}, {sT[1]}, 27
s_lshl_b32 {sT[1]}, {sT[1]}, 5
s_add_u32 {sT[0]}, {sT[0]}, {sT[1]}
s_mul_i32 {sT[2]}, {sWAVE}, 6144
s_add_u32 {sT[2]}, {sT[2]}, {WD_L}''')
    for i in range(6):
        a(f'''s_mov_b32 m0, {sT[2]}
s_add_u32 {sT[2]}, {sT[2]}, 1024
buffer_load_dwordx4 v7, {srd(rWD)}, {sT[0]} offen lds
s_add_u32 {sT[0]}, {sT[0]}, {32*1280}''')
    a(f'''s_waitcnt vmcnt(11)
s_branch Lffn_clr
Lffn_nod:
s_waitcnt vmcnt(5)
Lffn_clr:
s_barrier
s_cmp_lg_u32 {sWAVE}, 7
s_cbranch_scc1 Lffn_q
s_and_b32 {sT[0]}, {sROLE}, 63
s_lshl_b32 {sT[0]}, {sT[0]}, 2
v_mov_b32 v2, {sT[0]}
v_mov_b32 v3, 0x10000
s_mov_b64 exec, 1
buffer_atomic_add v3, v2, {srd(rDBG)}, 0 offen sc1
s_mov_b64 exec, -1
Lffn_q:''')
    q_loads()
    a(f'''v_lshrrev_b32 v4, 4, v1
v_lshlrev_b32 v4, 8, v4
v_and_b32 v5, 15, v1
v_lshl_add_u32 v4, v5, 3, v4
s_mul_i32 {sT[0]}, {sWAVE}, 5120
v_add_u32 v5, {sT[0]}, v4
s_mul_i32 {sT[0]}, {sWAVE}, 6144
s_add_u32 {sT[0]}, {sT[0]}, {WD_L}
v_add_u32 v4, {sT[0]}, v4
s_waitcnt vmcnt(0)''')
    stamp(5, 7)
    for s in range(5):
        a(f'ds_read_b64_tr_b16 {vr(FA1+4*s,2)}, v5 offset:{1024*s}\nds_read_b64_tr_b16 {vr(FA1+4*s+2,2)}, v5 offset:{1024*s+128}')
    a(f's_cmp_lt_u32 {sJ}, 27\ns_cbranch_scc1 Lln1')
    for s in range(6):
        a(f'ds_read_b64_tr_b16 {vr(FA2+4*s,2)}, v4 offset:{1024*s}\nds_read_b64_tr_b16 {vr(FA2+4*s+2,2)}, v4 offset:{1024*s+128}')
    a('s_branch Lln1')
    a('Lhelp:')
    q_loads()
    a('s_waitcnt vmcnt(0)')
    QF, L1, WF = 192, 202, 212
    T = 128
    a('Lln1:')
    for i in range(4): unpack(QF + 2*i, QR + i)
    unpack(QF + 8, 14)
    for i in range(4): unpack(WF + 2*i, WR + i)
    unpack(WF + 8, 15)
    ln_stats(QF, T)
    ln_apply(QF, T, L1, T + 8)
    a(f'''s_lshr_b32 {sT[0]}, {sTB}, 5
s_lshl_b32 {sT[0]}, {sT[0]}, 1
s_and_b32 {sT[1]}, {sTB}, 1
s_add_u32 {sT[0]}, {sT[0]}, {sT[1]}
s_lshl_b32 {sT[0]}, {sT[0]}, 2
s_bfe_u32 {sT[1]}, {sTB}, 0x20003
s_add_u32 {sT[0]}, {sT[0]}, {sT[1]}
s_mul_i32 {sT[0]}, {sT[0]}, 40960
s_bfe_u32 {sT[1]}, {sTB}, 0x20001
s_lshl_b32 {sT[1]}, {sT[1]}, 4
s_add_u32 {sT[0]}, {sT[0]}, {sT[1]}
s_add_u32 {sT[2]}, {sT[0]}, {Y_OFF}
s_add_u32 {sT[3]}, {sT[2]}, 32768
v_lshlrev_b32 v4, 6, v0
v_lshlrev_b32 v5, 2, v0
v_add_u32 v5, {TR}, v5
s_lshr_b32 {sT[0]}, {sWAVE}, 1
s_mul_i32 {sT[0]}, {sT[0]}, 2560
s_add_u32 {sT[0]}, {sT[0]}, {TR}
v_lshl_add_u32 v6, v1, 5, {sT[0]}
v_lshl_add_u32 v7, v1, 3, {sT[0]}
s_mov_b32 {sSEL}, 0x01000c0c
s_bitcmp1_b32 {sWAVE}, 0
s_cselect_b32 {sSEL}, 0x03020c0c, {sSEL}
v_mov_b32 v{T+4}, 0
v_mov_b32 v{T+5}, 0
v_mov_b32 v{T+6}, 0
v_mov_b32 v{T+7}, 0
s_mov_b32 s78, 0x00030003
s_mov_b32 s79, 0x00030003
s_mov_b32 {sCNT}, 0
s_add_u32 {sT[0]}, {sISCONV}, {sWAVE}
s_cmp_lg_u32 {sT[0]}, 0
s_cbranch_scc1 Lb2''')
    a(f'''v_cmp_gt_u32 vcc, 32, v1
v_mov_b32 v21, 0x10004
v_mov_b32 v22, 0x20004
v_cndmask_b32 v21, v21, v22, vcc
Lc3:
buffer_load_dword v20, v3, {srd(rDBG)}, 0 offen sc1
s_waitcnt vmcnt(0)
v_cmp_ne_u32 vcc, v21, v20
s_cbranch_vccz Lc3ok''')
    spin_check('Lc3', 'Lc3ok')
    a(f'''s_branch Lc3
Lc3ok:
s_sub_u32 {sT[0]}, {sTB}, 20
s_lshl_b32 {sT[0]}, {sT[0]}, 7
s_add_u32 {sT[0]}, {sT[0]}, {CAND_OFF + 64}
v_mov_b32 v21, 0
s_mov_b64 exec, 1
Lg:
buffer_load_dword v20, v21, {srd(rWS)}, {sT[0]} offen sc1
s_waitcnt vmcnt(0)
v_cmp_eq_u32 vcc, -1, v20
s_cbranch_vccz Lgok''')
    spin_check('Lg', 'Lgok')
    a(f'''s_sleep 1
s_branch Lg
Lgok:
s_mov_b64 exec, -1
Lb2:
s_waitcnt vmcnt(0) lgkmcnt(0)
s_barrier''')
    stamp(7)
    a(f'''s_mov_b32 {sCNT}, 0
Ly:
buffer_load_dwordx4 {vr(T,4)}, v4, {srd(rWS)}, {sT[2]} offen sc1
s_cmp_ge_u32 {sWAVE}, 2
s_cbranch_scc1 Ly1
buffer_load_dwordx4 {vr(T+4,4)}, v4, {srd(rWS)}, {sT[3]} offen sc1
Ly1:
s_waitcnt vmcnt(0)
v_max3_u32 v20, v{T}, v{T+1}, v{T+2}
v_max3_u32 v21, v{T+3}, v{T+4}, v{T+5}
v_max3_u32 v20, v20, v{T+6}, v{T+7}
v_max_u32 v20, v20, v21
v_cmp_eq_u32 vcc, -1, v20''')
    spin_check('Ly', 'Lyok')
    a(f'''s_and_b64 exec, exec, vcc
s_cbranch_execnz Ly
Lyok:
s_mov_b64 exec, -1
ds_write2st64_b32 v5, v{T}, v{T+1} offset0:0 offset1:10
ds_write2st64_b32 v5, v{T+2}, v{T+3} offset0:20 offset1:30
s_cmp_ge_u32 {sWAVE}, 2
s_cbranch_scc1 Ly2
ds_write2st64_b32 v5, v{T+4}, v{T+5} offset0:8 offset1:18
ds_write2st64_b32 v5, v{T+6}, v{T+7} offset0:28 offset1:38
Ly2:
s_waitcnt lgkmcnt(0)
s_barrier''')
    stamp(8)
    YR, HF, HP, XF, XP, OP = 136, 148, 160, 166, 176, 184
    a(f'''ds_read_b128 {vr(YR,4)}, v6
ds_read_b128 {vr(YR+4,4)}, v6 offset:16
ds_read_b64 {vr(YR+8,2)}, v7 offset:2048''')
    a('s_waitcnt lgkmcnt(2)')
    for i in range(4): a(f'v_perm_b32 v{YR+i}, v{YR+i}, v{YR+i}, {sSEL}')
    a('s_waitcnt lgkmcnt(0)')
    for i in range(4, 10): a(f'v_perm_b32 v{YR+i}, v{YR+i}, v{YR+i}, {sSEL}')
    for i in range(5): a(f'v_pk_fma_f32 {vr(HF+2*i,2)}, {vr(L1+2*i,2)}, {vr(YR+2*i,2)}, {vr(QF+2*i,2)}')
    for i in range(5): a(f'v_cvt_pk_bf16_f32 v{HP+i}, v{HF+2*i}, v{HF+2*i+1}')
    for i in range(5): unpack(HF + 2*i, HP + i)
    ln_stats(HF, T)
    ln_apply(HF, T, XF, XP)
    a(f'v_pk_mul_f32 {vr(T,2)}, {vr(XF,2)}, {vr(WF,2)}')
    a(f'v_pk_mul_f32 {vr(T+2,2)}, {vr(XF+2,2)}, {vr(WF+2,2)}')
    a(f'v_pk_fma_f32 {vr(T,2)}, {vr(XF+4,2)}, {vr(WF+4,2)}, {vr(T,2)}')
    a(f'v_pk_fma_f32 {vr(T+2,2)}, {vr(XF+6,2)}, {vr(WF+6,2)}, {vr(T+2,2)}')
    a(f'v_pk_fma_f32 {vr(T,2)}, {vr(XF+8,2)}, {vr(WF+8,2)}, {vr(T,2)}')
    a(f'v_pk_add_f32 {vr(T,2)}, {vr(T,2)}, {vr(T+2,2)}')
    a(f'v_add_f32 v{T}, v{T}, v{T+1}')
    wave_sum([f'v{T}'])
    round_bf16(f'v{T}', f'v{T}')
    a(f'''v_ashrrev_i32 v{T+1}, 31, v{T}
v_or_b32 v{T+1}, 0x80000000, v{T+1}
v_xor_b32 v{T}, v{T}, v{T+1}
s_lshl_b32 {sT[0]}, {sTB}, 3
s_add_u32 {sT[0]}, {sT[0]}, {sWAVE}
s_mul_i32 {sT[4]}, {sT[0]}, 1280           ; output row
s_sub_u32 {sT[0]}, 2047, {sT[0]}
s_lshl_b32 {sT[0]}, {sT[0]}, 1
v_and_b32 v{T}, {sHI}, v{T}
v_or_b32 v{T}, {sT[0]}, v{T}
s_lshl_b32 {sT[1]}, {sWAVE}, 2
s_add_u32 {sT[1]}, {sT[1]}, {KEY}
v_mov_b32 v{T+1}, {sT[1]}
v_readlane_b32 {sT[5]}, v{T}, 63
s_mov_b32 exec_lo, 0
s_brev_b32 exec_hi, 1
ds_write_b32 v{T+1}, v{T}
s_mov_b64 exec, -1''')
    for i in range(5): a(f'v_pk_add_f32 {vr(YR+2*i,2)}, {vr(HF+2*i,2)}, {vr(XF+2*i,2)}')
    for i in range(5): a(f'v_cvt_pk_bf16_f32 v{OP+i}, v{YR+2*i}, v{YR+2*i+1}')
    a(f'''v_mov_b32 v{T+1}, {KEY}
s_waitcnt lgkmcnt(0)
s_barrier
ds_read_b128 {vr(YR,4)}, v{T+1}
ds_read_b128 {vr(YR+4,4)}, v{T+1} offset:16''')
    for i in range(5): a(f'v_min_u32 v{XP+i}, {sFE}, v{XP+i}')
    for i in range(5): a(f'v_min_u32 v{HP+i}, {sFE}, v{HP+i}')
    a('s_waitcnt lgkmcnt(0)')
    def merge(h1, l1, h2, l2, t):
        a(f'v_min_u32 v{t}, v{h1}, v{h2}\nv_max_u32 v{h1}, v{h1}, v{h2}\nv_max3_u32 v{l1}, v{t}, v{l1}, v{l2}')
    for i in range(4):
        a(f'v_min_u32 v{T+i}, v{YR+2*i}, v{YR+2*i+1}\nv_max_u32 v{YR+2*i}, v{YR+2*i}, v{YR+2*i+1}')
    merge(YR, T, YR+2, T+1, T+4); merge(YR+4, T+2, YR+6, T+3, T+5); merge(YR, T, YR+4, T+2, T+4)
    a(f'''v_or_b32 v{YR+1}, 1, v{T}
v_readfirstlane_b32 {sT[6]}, v{YR}
v_readfirstlane_b32 {sT[7]}, v{T}
s_cmp_lg_u32 {sWAVE}, 0
s_cbranch_scc1 Lnc
s_lshl_b32 {sT[0]}, {sTB}, 7
s_add_u32 {sT[0]}, {sT[0]}, {CAND_OFF}
v_mov_b32 v{T+1}, 0
s_mov_b64 exec, 1
buffer_store_dwordx2 {vr(YR,2)}, v{T+1}, {srd(rWS)}, {sT[0]} offen sc1
s_mov_b64 exec, -1
Lnc:
s_mul_i32 {sT[0]}, {sTB}, 5120
s_add_u32 {sT[0]}, {sT[0]}, {ROWS_OFF}
s_cmp_eq_u32 {sT[5]}, {sT[6]}
s_cbranch_scc1 Lcand
s_add_u32 {sT[0]}, {sT[0]}, 2560
s_cmp_eq_u32 {sT[5]}, {sT[7]}
s_cbranch_scc1 Lcand
buffer_store_dwordx4 {vr(OP,4)}, v2, {srd(rOUT)}, {sT[4]} offen {cfg.out_flag}
buffer_store_dword v{OP+4}, v3, {srd(rOUT)}, {sT[4]} offen offset:1024 {cfg.out_flag}
s_branch Lpost
Lcand:
buffer_store_dwordx4 {vr(XP,4)}, v2, {srd(rWS)}, {sT[0]} offen sc1
buffer_store_dword v{XP+4}, v3, {srd(rWS)}, {sT[0]} offen offset:1024 sc1
buffer_store_dwordx4 {vr(OP,4)}, v2, {srd(rOUT)}, {sT[4]} offen sc1
buffer_store_dword v{OP+4}, v3, {srd(rOUT)}, {sT[4]} offen offset:1024 sc1
s_waitcnt vmcnt(0)
buffer_store_dwordx4 {vr(HP,4)}, v2, {srd(rWS)}, {sT[0]} offen offset:1280 sc1
buffer_store_dword v{HP+4}, v3, {srd(rWS)}, {sT[0]} offen offset:2304 sc1
Lpost:''')
    stamp(9)
    a(f's_cmp_lg_u32 {sISCONV}, 0\ns_cbranch_scc1 Lend')
    a(f'''s_cmp_ge_u32 {sWAVE}, 4
s_cbranch_scc1 Lb5
v_lshlrev_b32 v4, 7, v0
s_mov_b32 {sT[0]}, {CAND_OFF}
s_mov_b32 {sCNT}, 0
s_waitcnt vmcnt(0)
Lcd:
buffer_load_dwordx2 {vr(T,2)}, v4, {srd(rWS)}, {sT[0]} offen sc1
s_waitcnt vmcnt(0)
v_max_u32 v20, v{T}, v{T+1}
v_cmp_eq_u32 vcc, -1, v20''')
    spin_check('Lcd', 'Lcdok')
    a(f'''s_and_b64 exec, exec, vcc
s_cbranch_execnz Lcd
Lcdok:
s_mov_b64 exec, -1''')
    for m in ('row_shr:1', 'row_shr:2', 'row_shr:4', 'row_shr:8', 'row_bcast:15', 'row_bcast:31'):
        mm = m + {'row_bcast:15': ' row_mask:0xa bank_mask:0xf', 'row_bcast:31': ' row_mask:0xc bank_mask:0xf'}.get(m, ' row_mask:0xf bank_mask:0xf bound_ctrl:1')
        a(f'''v_min_u32_dpp v{T+2}, v{T}, v{T} {mm}
v_max_u32_dpp v{T+3}, v{T+1}, v{T+1} {mm}
v_max_u32_dpp v{T}, v{T}, v{T} {mm}
v_max_u32 v{T+1}, v{T+2}, v{T+3}''')
    a(f'''s_lshl_b32 {sT[0]}, {sWAVE}, 3
s_add_u32 {sT[0]}, {sT[0]}, {WTOP}
v_mov_b32 v{T+2}, {sT[0]}
s_mov_b32 exec_lo, 0
s_brev_b32 exec_hi, 1
ds_write_b64 v{T+2}, {vr(T,2)}
s_mov_b64 exec, -1
Lb5:
v_mov_b32 v{T+2}, {WTOP}
s_waitcnt lgkmcnt(0)
s_barrier
ds_read_b128 {vr(YR,4)}, v{T+2}
ds_read_b128 {vr(YR+4,4)}, v{T+2} offset:16
v_and_b32 v4, 15, v1
v_lshrrev_b32 v5, 4, v1
s_and_b32 {sT[2]}, {sWAVE}, 3
s_mul_i32 {sT[2]}, {sT[2]}, 320
v_lshl_add_u32 v6, v5, 4, {sT[2]}
v_cmp_eq_u32 s[82:83], 0, v4
s_waitcnt lgkmcnt(0)''')
    merge(YR, YR+1, YR+2, YR+3, T); merge(YR+4, YR+5, YR+6, YR+7, T+1); merge(YR, YR+1, YR+4, YR+5, T)
    a(f'v_readfirstlane_b32 {sKEY1}, v{YR}\nv_readfirstlane_b32 {sKEY2}, v{YR+1}')
    for key, row, idx in ((sKEY1, sROW1, sIDX1), (sKEY2, sROW2, sIDX2)):
        a(f'''s_bfe_u32 {sT[0]}, {key}, 0xb0001
s_sub_u32 {idx}, 2047, {sT[0]}
s_lshr_b32 {sT[0]}, {idx}, 3
s_mul_i32 {sT[0]}, {sT[0]}, 5120
s_and_b32 {sT[1]}, {key}, 1
s_mul_i32 {sT[1]}, {sT[1]}, 2560
s_add_u32 {row}, {sT[0]}, {sT[1]}''')
    XB = 140
    a(f'''v_mov_b32 v7, {sROW2}
v_mov_b32 v20, {sROW1}
v_cndmask_b32 v7, v7, v20, s[82:83]
v_add_u32 v6, v6, v7
s_mov_b32 {sT[0]}, {ROWS_OFF}
s_mov_b32 {sCNT}, 0
s_mov_b64 exec, {sM2}''')
    stamp(10)
    a('Lx:')
    for s in range(5): a(f'buffer_load_dwordx4 {vr(XB+4*s,4)}, v6, {srd(rWS)}, {sT[0]} offen offset:{64*s} sc1')
    a('s_waitcnt vmcnt(0)')
    a(f'v_max3_u32 v20, v{XB}, v{XB+1}, v{XB+2}')
    for r in range(XB+3, XB+19, 2): a(f'v_max3_u32 v20, v20, v{r}, v{r+1}')
    a(f'v_max_u32 v20, v20, v{XB+19}\nv_cmp_eq_u32 vcc, -1, v20')
    spin_check('Lx', 'Lxok')
    a(f'''s_and_b64 exec, exec, vcc
s_cbranch_execnz Lx
Lxok:
s_mov_b64 exec, -1''')
    for s in range(5): a(f'v_mfma_f32_16x16x32_bf16 {vr(T,4)}, {vr(FA1+4*s,4)}, {vr(XB+4*s,4)}, {"0" if s == 0 else vr(T,4)}')
    a(f'''s_lshl_b32 {sT[0]}, {sWAVE}, 7
s_add_u32 {sT[0]}, {sT[0]}, {RED1}
v_lshlrev_b32 v7, 6, v4
v_lshl_add_u32 v7, v5, 4, v7
v_add_u32 v7, {sT[0]}, v7
v_lshrrev_b32 v20, 3, v1
v_and_b32 v21, 7, v1
v_lshlrev_b32 v22, 3, v21
v_lshl_add_u32 v22, v20, 6, v22
v_add_u32 v22, {RED1}, v22
s_mov_b64 exec, {sM2}
ds_write_b128 v7, {vr(T,4)}
s_mov_b64 exec, -1
s_waitcnt lgkmcnt(0)
s_barrier
s_cmp_lg_u32 {sWAVE}, 0
s_cbranch_scc1 Lf2
s_mov_b64 exec, 0xffff''')
    P = 160
    for wv in range(8): a(f'ds_read_b64 {vr(P+2*wv,2)}, v22 offset:{128*wv}')
    a(f'''s_waitcnt lgkmcnt(4)
v_pk_add_f32 {vr(P,2)}, {vr(P,2)}, {vr(P+2,2)}
v_pk_add_f32 {vr(P+4,2)}, {vr(P+4,2)}, {vr(P+6,2)}
s_waitcnt lgkmcnt(0)
v_pk_add_f32 {vr(P+8,2)}, {vr(P+8,2)}, {vr(P+10,2)}
v_pk_add_f32 {vr(P+12,2)}, {vr(P+12,2)}, {vr(P+14,2)}
v_pk_add_f32 {vr(P,2)}, {vr(P,2)}, {vr(P+4,2)}
v_pk_add_f32 {vr(P+8,2)}, {vr(P+8,2)}, {vr(P+12,2)}
v_cvt_pk_bf16_f32 v{P+2}, v{P}, v{P+1}
v_cvt_pk_bf16_f32 v{P+3}, v{P+8}, v{P+9}''')
    unpack(P, P+2); unpack(P+8, P+3)
    a(f'''v_mul_f32 v{P+4}, 0xbfb8aa3b, v{P}
v_mul_f32 v{P+5}, 0xbfb8aa3b, v{P+1}
v_exp_f32 v{P+4}, v{P+4}
v_exp_f32 v{P+5}, v{P+5}
v_add_f32 v{P+4}, 1.0, v{P+4}
v_add_f32 v{P+5}, 1.0, v{P+5}
v_rcp_f32 v{P+4}, v{P+4}
v_rcp_f32 v{P+5}, v{P+5}
v_pk_mul_f32 {vr(P,2)}, {vr(P,2)}, {vr(P+4,2)}
v_cvt_pk_bf16_f32 v{P+2}, v{P}, v{P+1}''')
    unpack(P, P+2)
    a(f'''v_pk_mul_f32 {vr(P,2)}, {vr(P,2)}, {vr(P+8,2)}
v_cvt_pk_bf16_f32 v{P+2}, v{P}, v{P+1}
v_min_u32 v{P+2}, {sFE}, v{P+2}
s_lshl_b32 {sT[0]}, {sROLE}, 7
s_add_u32 {sT[0]}, {sT[0]}, {ACT_OFF}
buffer_store_dword v{P+2}, v3, {srd(rWS)}, {sT[0]} offen sc1
s_mov_b64 exec, -1
Lf2:''')
    stamp(11)
    a(f's_cmp_lt_u32 {sJ}, 27\ns_cbranch_scc1 Lend')
    AB = 140
    a(f'''s_mul_i32 {sT[3]}, {sX}, 5
s_add_u32 {sT[3]}, {sT[3]}, {sJ}
s_sub_u32 {sT[3]}, {sT[3]}, 27
s_lshl_b32 {sT[3]}, {sT[3]}, 5
v_mov_b32 v26, 0
s_mov_b32 {sCNT}, 0
s_cmp_lg_u32 {sWAVE}, 0
s_cbranch_scc1 Lf3
v_cmp_gt_u32 vcc, 8, v1
v_mov_b32 v24, {sROW2}
v_mov_b32 v25, {sROW1}
v_cndmask_b32 v24, v24, v25, vcc
v_lshl_add_u32 v24, v21, 2, v24
v_mov_b32 v26, {sIDX2}
v_mov_b32 v25, {sIDX1}
v_cndmask_b32 v26, v26, v25, vcc
v_mul_u32_u24 v26, 1280, v26
v_lshl_add_u32 v26, v21, 2, v26
v_mov_b32 v27, {sKEY2}
v_mov_b32 v25, {sKEY1}
v_cndmask_b32 v27, v27, v25, vcc
v_ashrrev_i32 v25, 31, v27
v_not_b32 v25, v25
v_or_b32 v25, 0x80000000, v25
v_xor_b32 v27, v27, v25
v_and_b32 v27, {sHI}, v27
v_mul_f32 v27, 0xbfb8aa3b, v27
v_exp_f32 v27, v27
v_add_f32 v27, 1.0, v27
v_rcp_f32 v27, v27''')
    round_bf16('v27', 'v27')
    a(f'''s_add_u32 {sT[4]}, {sT[3]}, {ROWS_OFF}
s_mov_b64 exec, 0xffff
Lh:
buffer_load_dword v28, v24, {srd(rWS)}, {sT[4]} offen sc1
buffer_load_dword v29, v24, {srd(rWS)}, {sT[4]} offen offset:1280 sc1
s_waitcnt vmcnt(0)
v_max_u32 v25, v28, v29
v_cmp_eq_u32 vcc, -1, v25''')
    spin_check('Lh', 'Lhok')
    a(f'''s_cbranch_vccnz Lh
Lhok:
s_mov_b64 exec, -1
Lf3:
s_barrier
v_lshrrev_b32 v6, 1, v5
v_lshlrev_b32 v6, 7, v6
v_and_b32 v23, 1, v5
v_lshl_add_u32 v6, v23, 4, v6
v_lshl_add_u32 v6, v4, 5, v6
s_mul_i32 {sT[0]}, {sWAVE}, 1536
s_add_u32 {sT[0]}, {sT[0]}, {ACT_OFF}
s_mov_b64 exec, {sM2}
La:''')
    for s in range(6): a(f'buffer_load_dwordx4 {vr(AB+4*s,4)}, v6, {srd(rWS)}, {sT[0]} offen offset:{256*s} sc1')
    a('s_waitcnt vmcnt(0)')
    a(f'v_max3_u32 v23, v{AB}, v{AB+1}, v{AB+2}')
    for r in range(AB+3, AB+23, 2): a(f'v_max3_u32 v23, v23, v{r}, v{r+1}')
    a(f'v_max_u32 v23, v23, v{AB+23}\nv_cmp_eq_u32 vcc, -1, v23')
    spin_check('La', 'Laok')
    a(f'''s_and_b64 exec, exec, vcc
s_cbranch_execnz La
Laok:
s_mov_b64 exec, -1''')
    for s in range(6): a(f'v_mfma_f32_16x16x32_bf16 {vr(T,4)}, {vr(FA2+4*s,4)}, {vr(AB+4*s,4)}, {"0" if s == 0 else vr(T,4)}')
    a(f'''s_nop 4
s_mov_b64 exec, {sM2}
ds_write_b128 v7, {vr(T,4)} offset:1024
s_mov_b64 exec, -1
s_waitcnt lgkmcnt(0)
s_barrier
s_cmp_lg_u32 {sWAVE}, 0
s_cbranch_scc1 Lend
s_mov_b64 exec, 0xffff''')
    P = 168
    for wv in range(8): a(f'ds_read_b64 {vr(P+2*wv,2)}, v22 offset:{1024 + 128*wv}')
    unpack(T, 28); unpack(T+2, 29)
    a(f'''s_waitcnt lgkmcnt(4)
v_pk_add_f32 {vr(P,2)}, {vr(P,2)}, {vr(P+2,2)}
v_pk_add_f32 {vr(P+4,2)}, {vr(P+4,2)}, {vr(P+6,2)}
s_waitcnt lgkmcnt(0)
v_pk_add_f32 {vr(P+8,2)}, {vr(P+8,2)}, {vr(P+10,2)}
v_pk_add_f32 {vr(P+12,2)}, {vr(P+12,2)}, {vr(P+14,2)}
v_pk_add_f32 {vr(P,2)}, {vr(P,2)}, {vr(P+4,2)}
v_pk_add_f32 {vr(P+8,2)}, {vr(P+8,2)}, {vr(P+12,2)}
v_pk_add_f32 {vr(P,2)}, {vr(P,2)}, {vr(P+8,2)}
v_cvt_pk_bf16_f32 v{P+2}, v{P}, v{P+1}''')
    unpack(P, P+2)
    a(f'''v_mul_f32 v{P}, v{P}, v27
v_mul_f32 v{P+1}, v{P+1}, v27
v_cvt_pk_bf16_f32 v{P+2}, v{P}, v{P+1}''')
    unpack(P, P+2)
    a(f'''v_pk_add_f32 {vr(P,2)}, {vr(P,2)}, {vr(T,2)}
v_cvt_pk_bf16_f32 v{P+2}, v{P}, v{P+1}''')
    unpack(P, P+2)
    a(f'''v_pk_add_f32 {vr(P,2)}, {vr(P,2)}, {vr(T+2,2)}
v_cvt_pk_bf16_f32 v{P+2}, v{P}, v{P+1}
buffer_store_dword v{P+2}, v26, {srd(rOUT)}, {sT[3]} offen sc1''')
    stamp(12)
    a('Lend:')
    if cfg.stamps:
        stamp(15)
        a(f'''s_mov_b64 exec, 0xffff
s_lshl_b32 {sT[0]}, s2, 3
s_add_u32 {sT[0]}, {sT[0]}, {sWAVE}
s_lshl_b32 {sT[0]}, {sT[0]}, 6
s_add_u32 {sT[0]}, {sT[0]}, {STAMP_OFF}
v_lshlrev_b32 v254, 2, v1
buffer_store_dword v253, v254, {srd(rWS)}, {sT[0]} offen''')
    a('Lexit:')
    body = a.finish()
    return body, a.nops

def full(cfg):
    body, nops = build(cfg)
    ref = open('cdna_kernels/' + NAME + '.s.ref').read().split('\n')
    head = [l for l in ref if l.startswith(';') and '@launch' not in l and 'Override' not in l and 'grid=ceil' not in l]
    s = '\n'.join(head) + f'\n; @launch grid=(256,1,1) block=(512,1,1) lds={LDS_SIZE}\n'
    s += f'''.amdgcn_target "amdgcn-amd-amdhsa--gfx950"
.text
.globl {NAME}_kernel
.p2align 8
.type {NAME}_kernel,@function
{NAME}_kernel:
{body}s_endpgm
.section .rodata,"a"
.p2align 6
.amdhsa_kernel {NAME}_kernel
  .amdhsa_next_free_vgpr 256
  .amdhsa_next_free_sgpr 96
  .amdhsa_accum_offset 256
  .amdhsa_group_segment_fixed_size 0
  .amdhsa_kernarg_size 112
  .amdhsa_user_sgpr_count 2
  .amdhsa_user_sgpr_kernarg_segment_ptr 1
  .amdhsa_system_sgpr_workgroup_id_x 1
  .amdhsa_float_denorm_mode_32 3
.end_amdhsa_kernel
'''
    return s

if __name__ == '__main__':
    cfg = Cfg()
    out = f'cdna_kernels/{NAME}.s'
    for arg in sys.argv[1:]:
        if '=' in arg:
            k, v = arg.split('=', 1)
            if k == 'out': out = v
            else: setattr(cfg, k, type(getattr(cfg, k))(int(v)) if isinstance(getattr(cfg, k), (bool, int)) else v)
    open(out, 'w').write(full(cfg))
    print('wrote', out)
```
